```python
import torch

def _softmax(x, axis=-1):
    return torch.softmax(x, dim=axis)
def _gelu(x):
    return torch.nn.functional.gelu(x, approximate="tanh")
def _silu(x):
    return torch.nn.functional.silu(x)
def _sigmoid(x):
    return torch.sigmoid(x)
def _layernorm(x, axis=-1, eps=1e-5):
    m = x.mean(dim=axis, keepdim=True)
    v = x.var(dim=axis, keepdim=True, unbiased=False)
    return (x - m) / torch.sqrt(v + eps)
def _scatter_add(tgt, idx, src, axis=0):
    return tgt.clone().index_add_(axis, idx, src)
def _segment_sum(src, seg, n):
    out = torch.zeros((n,) + src.shape[1:], dtype=src.dtype)
    return out.index_add_(0, seg, src)
def _pad(x, pw):
    flat = tuple(v for pair in reversed(pw) for v in pair)
    return torch.nn.functional.pad(x, flat)

kernel_name = 'recurrent_scan__sliding_block__dense_activation_relu__prompt'

def setup_inputs():

    _w = (lambda a: (lambda t: t.to(torch.bfloat16) if t.is_floating_point() else t)(torch.as_tensor(a)))
    def _A_setup():
        B, S, D = 1, 2048, 640
        return {
            "x": _w((lambda *s: torch.randn(*s, dtype=torch.bfloat16) * 0.05)(B, S, D)),
            "wqkv": _w((lambda *s: torch.randn(*s, dtype=torch.bfloat16) * 0.05)(D, 3 * D)),
            "wo": _w((lambda *s: torch.randn(*s, dtype=torch.bfloat16) * 0.05)(D, D)),
        }
    _A_in = _A_setup()

    def _B_setup():
        B, S, D, Dff = 1, 2048, 640, 1536
        return {
            "x": _w((lambda *s: torch.randn(*s, dtype=torch.bfloat16) * 0.05)(B, S, D)),
            "w1": _w((lambda *s: torch.randn(*s, dtype=torch.bfloat16) * 0.05)(D, Dff)),
            "w2": _w((lambda *s: torch.randn(*s, dtype=torch.bfloat16) * 0.05)(Dff, D)),
        }
    _B_in = _B_setup()

    return {
        "A_x": _A_in["x"],
        "A_wqkv": _A_in["wqkv"],
        "A_wo": _A_in["wo"],
        "B_x": _B_in["x"],
        "B_w1": _B_in["w1"],
        "B_w2": _B_in["w2"],
    }

def reference(A_x, A_wqkv, A_wo, B_x, B_w1, B_w2):
    def _A_ref(x, wqkv, wo):
        B, S, D = x.shape
        H = 32; Dh = D // H; W = 256
        qkv = (lambda x, *d: x.permute(*d))((x @ wqkv).reshape(B, S, 3, H, Dh), 2, 0, 3, 1, 4)
        q, k, v = qkv[0], qkv[1], qkv[2]
        scores = torch.einsum("bhqd,bhkd->bhqk", q, k) * (Dh ** -0.5)
        idx = torch.arange(S)
        mask = (idx[:, None] - idx[None, :] >= 0) & (idx[:, None] - idx[None, :] < W)
        scores = torch.where(mask[None, None], scores, -1e9)
        p = _softmax(scores, axis=-1)
        o = torch.einsum("bhqk,bhkd->bhqd", p, v)
        return (lambda x, *d: x.permute(*d))(o, 0, 2, 1, 3).reshape(B, S, D) @ wo

    def _B_ref(x, w1, w2):
        h = torch.einsum("bsd,df->bsf", x, w1)
        zero = torch.zeros_like(h)
        h = torch.maximum(h, zero)
        return torch.einsum("bsf,fd->bsd", h, w2)

    x = A_x
    xn = _layernorm(x, axis=-1)
    s = _A_ref(xn, A_wqkv, A_wo)
    g = _silu(_B_ref(xn, B_w1, B_w2))
    return x + s * g
```

```python
class K:
    def __init__(self, name):
        self.name = name
        self.lines = []
        self.lbl = 0
        self.max_v = 0
        self.max_a = -1
        self.max_s = 0

    def e(self, s):
        self.lines.append("    " + s)

    def c(self, s):
        self.lines.append("    ; " + s)

    def label(self, name):
        self.lines.append(name + ":")

    def newlabel(self, stem="L"):
        self.lbl += 1
        return f"{self.name}_{stem}{self.lbl}"

    def nop(self, n):
        while n > 0:
            k = min(n, 16)
            self.e(f"s_nop {k - 1}")
            n -= k

    def srd(self, sb, sptr, nbytes):
        self.e(f"s_mov_b32 s{sb}, s{sptr}")
        self.e(f"s_and_b32 s{sb + 1}, s{sptr + 1}, 0xffff")
        self.e(f"s_mov_b32 s{sb + 2}, {nbytes}")
        self.e(f"s_mov_b32 s{sb + 3}, 0x00020000")

    def text(self, vgprs, agprs=0, sgprs=100):
        acc = (vgprs + 3) // 4 * 4
        nfv = acc + agprs if agprs else vgprs
        code = [
            f".globl {self.name}",
            ".p2align 8",
            f".type {self.name},@function",
            f"{self.name}:",
        ] + self.lines
        desc = [
            f".amdhsa_kernel {self.name}",
            f"  .amdhsa_next_free_vgpr {nfv}",
            f"  .amdhsa_next_free_sgpr {sgprs}",
            f"  .amdhsa_accum_offset {acc}",
            "  .amdhsa_group_segment_fixed_size 0",
            "  .amdhsa_kernarg_size 72",
            "  .amdhsa_user_sgpr_count 2",
            "  .amdhsa_user_sgpr_kernarg_segment_ptr 1",
            "  .amdhsa_system_sgpr_workgroup_id_x 1",
            ".end_amdhsa_kernel",
        ]
        return "\n".join(code), "\n".join(desc)
```

```python
import sys
from asmlib import K

S, D, H, DH, WIN, DFF = 2048, 640, 32, 20, 256, 1536
NY = 3 * D + DFF
XN_OFF, XN_SZ = 0, S * D * 2
Y_OFF, Y_SZ = 0x280000, S * NY * 2
O_OFF, O_SZ = 0x1000000, S * D * 2
F_OFF, F_SZ = 0x1400000, 2 * S * D * 4
MAIN = "recurrent_scan__sliding_block__dense_activation_relu__prompt_kernel"


def ws_srd(k, sb, sws, off, size):
    k.e(f"s_add_u32 s{sb}, s{sws}, {off}")
    k.e(f"s_addc_u32 s{sb + 1}, s{sws + 1}, 0")
    k.e(f"s_and_b32 s{sb + 1}, s{sb + 1}, 0xffff")
    k.e(f"s_mov_b32 s{sb + 2}, {size}")
    k.e(f"s_mov_b32 s{sb + 3}, 0x00020000")


def gen_ln(name):
    k = K(name)
    done = k.newlabel("done")
    k.e("s_cmp_ge_u32 s2, 128")
    k.e(f"s_cbranch_scc1 {done}")
    k.e("s_load_dwordx2 s[4:5], s[0:1], 0")
    k.e("s_load_dwordx2 s[6:7], s[0:1], 64")
    k.e("v_lshrrev_b32 v1, 4, v0")
    k.e("s_lshl_b32 s3, s2, 4")
    k.e("v_add_u32 v1, s3, v1")
    k.e("v_mul_u32_u24 v2, 1280, v1")
    k.e("v_and_b32 v3, 15, v0")
    k.e("v_lshl_add_u32 v2, v3, 4, v2")
    k.e("s_waitcnt lgkmcnt(0)")
    k.srd(8, 4, S * D * 2)
    ws_srd(k, 12, 6, XN_OFF, XN_SZ)
    for j in range(5):
        k.e(f"buffer_load_dwordx4 v[{4 + 4 * j}:{7 + 4 * j}], v2, s[8:11], 0 offen offset:{256 * j}")
    k.e("s_waitcnt vmcnt(0)")
    F = 32
    for i in range(20):
        k.e(f"v_lshlrev_b32 v{F + 2 * i}, 16, v{4 + i}")
        k.e(f"v_and_b32 v{F + 2 * i + 1}, 0xffff0000, v{4 + i}")

    def allreduce(reg, tmp):
        for r in (8, 4, 2, 1):
            k.nop(2)
            k.e(f"v_add_f32_dpp v{tmp}, v{reg}, v{reg} row_ror:{r} row_mask:0xf bank_mask:0xf")
            k.e(f"v_mov_b32 v{reg}, v{tmp}")

    k.e(f"v_add_f32 v72, v{F}, v{F + 1}")
    k.e(f"v_add_f32 v73, v{F + 2}, v{F + 3}")
    for i in range(4, 40, 2):
        k.e(f"v_add_f32 v72, v72, v{F + i}")
        k.e(f"v_add_f32 v73, v73, v{F + i + 1}")
    k.e("v_add_f32 v72, v72, v73")
    allreduce(72, 74)
    k.e(f"v_mul_f32 v72, {1.0 / D!r}, v72")
    for i in range(40):
        k.e(f"v_sub_f32 v{F + i}, v{F + i}, v72")
    k.e(f"v_mul_f32 v73, v{F}, v{F}")
    k.e(f"v_mul_f32 v75, v{F + 1}, v{F + 1}")
    for i in range(2, 40, 2):
        k.e(f"v_fmac_f32 v73, v{F + i}, v{F + i}")
        k.e(f"v_fmac_f32 v75, v{F + i + 1}, v{F + i + 1}")
    k.e("v_add_f32 v73, v73, v75")
    allreduce(73, 74)
    k.e(f"v_mov_b32 v75, {1e-5!r}")
    k.e(f"v_fmac_f32 v75, {1.0 / D!r}, v73")
    k.e("v_rsq_f32 v75, v75")
    k.nop(1)
    for i in range(40):
        k.e(f"v_mul_f32 v{F + i}, v{F + i}, v75")
    for i in range(20):
        k.e(f"v_cvt_pk_bf16_f32 v{4 + i}, v{F + 2 * i}, v{F + 2 * i + 1}")
    for j in range(5):
        k.e(f"buffer_store_dwordx4 v[{4 + 4 * j}:{7 + 4 * j}], v2, s[12:15], 0 offen offset:{256 * j}")
    k.label(done)
    k.e("s_endpgm")
    return k.text(vgprs=76), (128, 256, 0)


class GemmCfg:
    def __init__(self, BM, NC, lda):
        self.BM, self.BN, self.NC, self.lda = BM, 128, NC, lda
        self.WM, self.WN = BM // 2, 64
        self.MF, self.NF = self.WM // 32, 2
        self.ABYTES = BM * 128
        self.BBYTES = 64 * 256
        self.STAGE = self.ABYTES + self.BBYTES
        self.nA = BM // 8 // 4
        self.nB = 4
        self.lds = 3 * self.STAGE


def gemm_body(k, g, SA, SB, sArow, sBcol, sLdb, V0=8):
    MF, NF, NC = g.MF, g.NF, g.NC
    vAe, vAo, vB = V0, V0 + 1, V0 + 2
    vRA = [V0 + 3 + i for i in range(4)]
    vRB = [V0 + 7 + i for i in range(NF)]
    vCA = [V0 + 9 + i for i in range(4)]
    vCB = [V0 + 13 + i for i in range(NF)]
    vT0, vT1, vT2 = V0 + 15, V0 + 16, V0 + 17
    fr0 = V0 + 18
    fr0 = (fr0 + 3) // 4 * 4
    FA = [[fr0 + (b * MF + m) * 4 for m in range(MF)] for b in range(2)]
    fb0 = fr0 + 2 * MF * 4
    FB = [[fb0 + (b * NF + n) * 4 for n in range(NF)] for b in range(2)]
    vend = fb0 + 2 * NF * 4
    sW, sWA, sWB, sT, sM = 40, 41, 42, 43, 44
    lda = g.lda
    k.e("v_lshrrev_b32 v%d, 6, v0" % vT0)
    k.nop(1)
    k.e(f"v_readfirstlane_b32 s{sW}, v{vT0}")
    k.e(f"v_and_b32 v{vT1}, 63, v0")
    k.e(f"v_lshrrev_b32 v{vT2}, 3, v{vT1}")
    k.e(f"v_mul_u32_u24 v{vAe}, {lda}, v{vT2}")
    k.e(f"v_lshrrev_b32 v{vT2}, 4, v{vT1}")
    k.e(f"v_and_b32 v{vAo}, 7, v{vT1}")
    k.e(f"v_xor_b32 v{vT2}, v{vT2}, v{vAo}")
    k.e(f"v_xor_b32 v{vAo}, 4, v{vT2}")
    k.e(f"v_lshl_add_u32 v{vAo}, v{vAo}, 4, v{vAe}")
    k.e(f"v_lshl_add_u32 v{vAe}, v{vT2}, 4, v{vAe}")
    k.e(f"v_lshrrev_b32 v{vT2}, 4, v{vT1}")
    k.e(f"v_mul_lo_u32 v{vB}, v{vT2}, s{sLdb}")
    k.e(f"v_lshlrev_b32 v{vT2}, 2, v{vT2}")
    k.e(f"v_and_b32 v{vRA[0]}, 15, v{vT1}")
    k.e(f"v_xor_b32 v{vT2}, v{vT2}, v{vRA[0]}")
    k.e(f"v_lshl_add_u32 v{vB}, v{vT2}, 4, v{vB}")
    k.e(f"s_mul_i32 s{sWA}, s{sW}, {g.nA * 8 * lda}")
    k.e(f"s_add_u32 s{sWA}, s{sWA}, s{sArow}")
    k.e(f"s_lshl_b32 s{sT}, s{sW}, 4")
    k.e(f"s_mul_i32 s{sWB}, s{sT}, s{sLdb}")
    k.e(f"s_add_u32 s{sWB}, s{sWB}, s{sBcol}")
    k.e(f"s_lshr_b32 s{sT}, s{sW}, 1")
    k.e(f"s_mul_i32 s{sT}, s{sT}, {g.WM * 128}")
    k.e(f"v_and_b32 v{vT2}, 31, v{vT1}")
    k.e(f"v_lshl_add_u32 v{vT0}, v{vT2}, 7, s{sT}")
    k.e(f"v_bfe_u32 v{vT2}, v{vT1}, 1, 3")
    k.e(f"v_lshrrev_b32 v{vCA[0]}, 5, v{vT1}")
    for ks in range(4):
        k.e(f"v_add_u32 v{vCA[1]}, {2 * ks}, v{vCA[0]}")
        k.e(f"v_xor_b32 v{vCA[1]}, v{vCA[1]}, v{vT2}")
        k.e(f"v_lshl_add_u32 v{vRA[ks]}, v{vCA[1]}, 4, v{vT0}")
    k.e(f"v_lshrrev_b32 v{vT0}, 5, v{vT1}")
    k.e(f"v_lshlrev_b32 v{vT0}, 3, v{vT0}")
    k.e(f"v_bfe_u32 v{vT2}, v{vT1}, 2, 2")
    k.e(f"v_add_u32 v{vT0}, v{vT0}, v{vT2}")
    k.e(f"v_lshlrev_b32 v{vT0}, 8, v{vT0}")
    k.e(f"v_bfe_u32 v{vCA[1]}, v{vT1}, 4, 1")
    k.e(f"v_lshl_add_u32 v{vT0}, v{vCA[1]}, 5, v{vT0}")
    k.e(f"v_and_b32 v{vCA[1]}, 3, v{vT1}")
    k.e(f"v_lshl_add_u32 v{vT0}, v{vCA[1]}, 3, v{vT0}")
    k.e(f"v_add_u32 v{vT0}, {g.ABYTES}, v{vT0}")
    k.e(f"s_and_b32 s{sT}, s{sW}, 1")
    k.e(f"s_lshl_b32 s{sT}, s{sT}, 1")
    for nf in range(NF):
        k.e(f"s_add_u32 s{sM}, s{sT}, {nf}")
        k.e(f"v_xor_b32 v{vCA[1]}, s{sM}, v{vT2}")
        k.e(f"v_lshl_add_u32 v{vRB[nf]}, v{vCA[1]}, 6, v{vT0}")

    def dma(c):
        st = (c % 3) * g.STAGE
        for j in range(g.nA):
            k.e(f"s_mul_i32 s{sM}, s{sW}, {g.nA * 1024}")
            k.e(f"s_add_u32 m0, s{sM}, {st + j * 1024}")
            k.e(f"s_add_u32 s{sT}, s{sWA}, {j * 8 * lda + c * 128}")
            k.e(f"buffer_load_dwordx4 v{vAe if j % 2 == 0 else vAo}, s[{SA}:{SA + 3}], s{sT} offen lds")
        for j in range(g.nB):
            k.e(f"s_lshl_b32 s{sM}, s{sW}, 12")
            k.e(f"s_add_u32 m0, s{sM}, {st + g.ABYTES + j * 1024}")
            k.e(f"s_mul_i32 s{sT}, s{sLdb}, {c * 64 + 4 * j}")
            k.e(f"s_add_u32 s{sT}, s{sT}, s{sWB}")
            k.e(f"buffer_load_dwordx4 v{vB}, s[{SB}:{SB + 3}], s{sT} offen lds")

    nd = g.nA + g.nB

    def setaddr(c):
        st = (c % 3) * g.STAGE
        for ks in range(4):
            k.e(f"v_add_u32 v{vCA[ks]}, {st}, v{vRA[ks]}")
        for nf in range(NF):
            k.e(f"v_add_u32 v{vCB[nf]}, {st}, v{vRB[nf]}")

    def reads(ks, b):
        for m in range(MF):
            k.e(f"ds_read_b128 v[{FA[b][m]}:{FA[b][m] + 3}], v{vCA[ks]} offset:{m * 4096}")
        for n in range(NF):
            k.e(f"ds_read_b64_tr_b16 v[{FB[b][n]}:{FB[b][n] + 1}], v{vCB[n]} offset:{ks * 4096}")
            k.e(f"ds_read_b64_tr_b16 v[{FB[b][n] + 2}:{FB[b][n] + 3}], v{vCB[n]} offset:{ks * 4096 + 1024}")

    nr = MF + 2 * NF

    def mfmas(b, first):
        for m in range(MF):
            for n in range(NF):
                a = (m * NF + n) * 16
                cin = "0" if first else f"a[{a}:{a + 15}]"
                k.e(f"v_mfma_f32_32x32x16_bf16 a[{a}:{a + 15}], v[{FB[b][n]}:{FB[b][n] + 3}], "
                    f"v[{FA[b][m]}:{FA[b][m] + 3}], {cin}")

    for c in range(min(3, NC)):
        dma(c)
    k.e(f"s_waitcnt vmcnt({(min(3, NC) - 1) * nd})")
    k.e("s_barrier")
    setaddr(0)
    reads(0, 0)
    for c in range(NC):
        for ks in range(4):
            b = ks & 1
            if ks < 3:
                reads(ks + 1, b ^ 1)
                k.e(f"s_waitcnt lgkmcnt({nr})")
                mfmas(b, c == 0 and ks == 0)
            else:
                k.e("s_waitcnt lgkmcnt(0)")
                if c + 1 < NC:
                    inflight = min(NC - 1, c + 2) - (c + 1)
                    k.e(f"s_waitcnt vmcnt({inflight * nd})")
                    k.e("s_barrier")
                    if c + 3 < NC:
                        dma(c + 3)
                    setaddr(c + 1)
                    reads(0, b ^ 1)
                mfmas(b, False)
    return vend


def gen_gemm1(name):
    k = K(name)
    g = GemmCfg(BM=256, NC=D // 64, lda=D * 2)
    done = k.newlabel("done")
    k.e("s_cmp_ge_u32 s2, 256")
    k.e(f"s_cbranch_scc1 {done}")
    k.e("s_and_b32 s20, s2, 7")
    k.e("s_lshr_b32 s21, s2, 3")
    k.e("s_and_b32 s22, s21, 3")
    k.e("s_lshl_b32 s22, s22, 3")
    k.e("s_add_u32 s20, s20, s22")
    k.e("s_lshr_b32 s21, s21, 2")
    k.e("s_cmp_ge_u32 s20, 27")
    k.e(f"s_cbranch_scc1 {done}")
    k.e("s_load_dwordx2 s[4:5], s[0:1], 8")
    k.e("s_load_dwordx2 s[6:7], s[0:1], 32")
    k.e("s_load_dwordx2 s[24:25], s[0:1], 64")
    k.e("s_waitcnt lgkmcnt(0)")
    ws_srd(k, 8, 24, XN_OFF, XN_SZ)
    ws_srd(k, 16, 24, Y_OFF, Y_SZ)
    k.e(f"s_mov_b32 s14, {D * DFF * 2}")
    k.e(f"s_mov_b32 s26, {DFF * 2}")
    k.e("s_mov_b32 s29, 0")
    k.e("s_cmp_lt_u32 s20, 15")
    k.e("s_cselect_b32 s12, s4, s6")
    k.e("s_cselect_b32 s13, s5, s7")
    k.e(f"s_cselect_b32 s14, {D * 3 * D * 2}, s14")
    k.e(f"s_cselect_b32 s26, {3 * D * 2}, s26")
    k.e("s_cselect_b32 s27, 0, 15")
    k.e("s_cselect_b32 s29, 0xff7fffff, s29")
    k.e("s_and_b32 s13, s13, 0xffff")
    k.e("s_mov_b32 s15, 0x00020000")
    k.e("s_sub_u32 s27, s20, s27")
    k.e("s_lshl_b32 s27, s27, 8")
    k.e(f"s_mul_i32 s28, s21, {g.BM * D * 2}")
    V0 = 8
    vend = gemm_body(k, g, 8, 12, 28, 27, 26, V0)
    k.nop(16)
    va, vt = 1, 2
    k.e("v_and_b32 v3, 63, v0")
    k.e("v_and_b32 v4, 31, v3")
    k.e("s_lshr_b32 s30, s40, 1")
    k.e(f"s_mul_i32 s30, s30, {g.WM}")
    k.e(f"s_mul_i32 s31, s21, {g.BM}")
    k.e("s_add_u32 s30, s30, s31")
    k.e("v_add_u32 v4, s30, v4")
    k.e(f"v_mul_u32_u24 v{va}, {NY * 2}, v4")
    k.e("v_lshrrev_b32 v4, 5, v3")
    k.e(f"v_lshl_add_u32 v{va}, v4, 3, v{va}")
    k.e("s_and_b32 s30, s40, 1")
    k.e("s_lshl_b32 s30, s30, 7")
    k.e("s_lshl_b32 s31, s20, 8")
    k.e("s_add_u32 s30, s30, s31")
    k.e(f"v_add_u32 v{va}, s30, v{va}")
    T = vend
    for m in range(g.MF):
        for n in range(g.NF):
            a = (m * g.NF + n) * 16
            for q in range(4):
                for i in range(4):
                    k.e(f"v_accvgpr_read_b32 v{T + i}, a{a + 4 * q + i}")
                for i in range(4):
                    k.e(f"v_max_f32 v{T + i}, s29, v{T + i}")
                k.e(f"v_cvt_pk_bf16_f32 v{T + 4}, v{T}, v{T + 1}")
                k.e(f"v_cvt_pk_bf16_f32 v{T + 5}, v{T + 2}, v{T + 3}")
                k.e(f"s_mov_b32 s31, {m * 32 * NY * 2}")
                k.e(f"buffer_store_dwordx2 v[{T + 4}:{T + 5}], v{va}, s[16:19], s31 offen offset:{n * 64 + q * 16}")
                k.nop(1)
    k.label(done)
    k.e("s_endpgm")
    return k.text(vgprs=vend + 8, agprs=g.MF * g.NF * 16), (256, 256, g.lds)


def epi_addr(k, g, smt, snt, ldc_bytes, esz, va):
    k.e("v_and_b32 v3, 63, v0")
    k.e("v_and_b32 v4, 31, v3")
    k.e("s_lshr_b32 s30, s40, 1")
    k.e(f"s_mul_i32 s30, s30, {g.WM}")
    k.e(f"s_mul_i32 s31, s{smt}, {g.BM}")
    k.e("s_add_u32 s30, s30, s31")
    k.e("v_add_u32 v4, s30, v4")
    k.e(f"v_mul_u32_u24 v{va}, {ldc_bytes}, v4")
    k.e("v_lshrrev_b32 v4, 5, v3")
    k.e(f"v_mul_u32_u24 v4, {4 * esz}, v4")
    k.e(f"v_add_u32 v{va}, v4, v{va}")
    k.e("s_and_b32 s30, s40, 1")
    k.e(f"s_mul_i32 s30, s30, {64 * esz}")
    k.e(f"s_mul_i32 s31, s{snt}, {128 * esz}")
    k.e("s_add_u32 s30, s30, s31")
    k.e(f"v_add_u32 v{va}, s30, v{va}")


CEXP = (DH ** -0.5) * 1.4426950408889634


def attn_body(k, sblk):
    KB, VB = 0, 384 * 64
    ws_srd(k, 8, 24, Y_OFF, Y_SZ)
    ws_srd(k, 12, 24, O_OFF, O_SZ)
    k.e(f"s_and_b32 s20, s{sblk}, 31")
    k.e(f"s_lshr_b32 s21, s{sblk}, 5")
    k.e("s_lshl_b32 s21, s21, 7")
    k.e("s_mul_i32 s22, s20, 40")
    k.e("v_lshrrev_b32 v1, 6, v0")
    k.nop(1)
    k.e("v_readfirstlane_b32 s40, v1")
    for rep in range(2):
        skip = k.newlabel("stg")
        if rep:
            k.e("v_cmp_gt_u32 vcc, 128, v0")
            k.e("s_and_saveexec_b64 s[34:35], vcc")
            k.e(f"s_cbranch_execz {skip}")
        k.e(f"v_add_u32 v2, {256 * rep}, v0")
        k.e("s_sub_u32 s23, s21, 256")
        k.e("v_add_u32 v3, s23, v2")
        k.e(f"v_mul_lo_u32 v3, v3, s26")
        k.e("v_add_u32 v3, s22, v3")
        for p in range(5):
            k.e(f"buffer_load_dwordx2 v[{10 + 2 * p}:{11 + 2 * p}], v3, s[8:11], 0 offen offset:{1280 + 8 * p}")
            k.e(f"buffer_load_dwordx2 v[{20 + 2 * p}:{21 + 2 * p}], v3, s[8:11], 0 offen offset:{2560 + 8 * p}")
        k.e("v_lshlrev_b32 v4, 6, v2")
        k.e("v_bfe_u32 v5, v2, 2, 2")
        k.e("v_mov_b32 v30, 0")
        k.e("v_mov_b32 v31, 0")
        k.e("v_mov_b32 v32, 0")
        k.e("v_mov_b32 v33, 0")
        for sl in range(4):
            k.e(f"v_xor_b32 v6, {sl}, v5")
            k.e(f"v_lshl_add_u32 v{34 + sl}, v6, 4, v4")
        k.e(f"ds_write_b64 v36, v[30:31] offset:{KB + 8}")
        k.e(f"ds_write_b128 v37, v[30:33] offset:{KB}")
        k.e(f"ds_write_b64 v4, v[30:31] offset:{VB + 40}")
        k.e(f"ds_write_b128 v4, v[30:33] offset:{VB + 48}")
        k.e("s_waitcnt vmcnt(0)")
        for p in range(5):
            k.e(f"ds_write_b64 v{34 + (p >> 1)}, v[{10 + 2 * p}:{11 + 2 * p}] offset:{KB + (p & 1) * 8}")
            k.e(f"ds_write_b64 v4, v[{20 + 2 * p}:{21 + 2 * p}] offset:{VB + 8 * p}")
        if rep:
            k.label(skip)
            k.e("s_mov_b64 exec, s[34:35]")
    k.e("v_and_b32 v1, 63, v0")
    k.e("v_and_b32 v2, 31, v1")
    k.e("v_lshrrev_b32 v3, 5, v1")
    k.e("s_lshl_b32 s23, s40, 5")
    k.e("s_add_u32 s27, s23, s21")
    k.e("v_add_u32 v4, s27, v2")
    k.e("v_mul_lo_u32 v5, v4, s26")
    k.e("v_add_u32 v5, s22, v5")
    k.e("v_lshl_add_u32 v6, v3, 4, v5")
    k.e("buffer_load_dwordx4 v[8:11], v6, s[8:11], 0 offen")
    k.e("buffer_load_dwordx2 v[12:13], v5, s[8:11], 0 offen offset:32")
    k.e("v_mov_b32 v14, 0")
    k.e("v_mov_b32 v15, 0")
    k.e("v_mul_u32_u24 v7, 1280, v4")
    k.e("v_add_u32 v7, s22, v7")
    k.e("v_lshl_add_u32 v7, v3, 3, v7")
    k.e("v_bfe_u32 v16, v2, 2, 2")
    k.e("v_lshl_add_u32 v17, s23, 6, 0")
    k.e("v_lshl_add_u32 v17, v2, 6, v17")
    k.e("v_xor_b32 v18, v3, v16")
    k.e("v_lshl_add_u32 v18, v18, 4, v17")
    k.e("v_add_u32 v19, 2, v3")
    k.e("v_xor_b32 v19, v19, v16")
    k.e("v_lshl_add_u32 v19, v19, 4, v17")
    k.e("v_lshlrev_b32 v20, 2, v3")
    k.e("v_bfe_u32 v21, v1, 2, 2")
    k.e("v_add_u32 v20, v20, v21")
    k.e("v_add_u32 v20, s23, v20")
    k.e("v_lshlrev_b32 v20, 6, v20")
    k.e("v_bfe_u32 v21, v1, 4, 1")
    k.e("v_lshl_add_u32 v20, v21, 5, v20")
    k.e("v_and_b32 v21, 3, v1")
    k.e("v_lshl_add_u32 v20, v21, 3, v20")
    k.e(f"v_add_u32 v20, {VB}, v20")
    k.e("v_lshlrev_b32 v21, 2, v3")
    k.e("v_sub_u32 v21, v2, v21")
    k.e("s_waitcnt vmcnt(0)")
    k.e("v_cmp_eq_u32 vcc, 0, v3")
    k.nop(1)
    k.e("v_cndmask_b32 v12, 0, v12, vcc")
    k.e("v_cndmask_b32 v13, 0, v13, vcc")
    k.e("s_waitcnt lgkmcnt(0)")
    k.e("s_barrier")
    SB, KF, OB, VF = 64, 24, 40, 32
    k.e("v_mov_b32 v22, 0xf149f2ca")
    for t in range(9):
        sr = SB + 16 * t
        skip, nxt = k.newlabel("sk"), k.newlabel("nx")
        k.e(f"s_add_u32 s28, s27, {32 * t}")
        k.e("s_cmp_lt_u32 s28, 256")
        k.e(f"s_cbranch_scc1 {skip}")
        k.e(f"ds_read_b128 v[{KF}:{KF + 3}], v18 offset:{t * 2048}")
        k.e(f"ds_read_b128 v[{KF + 4}:{KF + 7}], v19 offset:{t * 2048}")
        k.e("s_waitcnt lgkmcnt(1)")
        k.e(f"v_mfma_f32_32x32x16_bf16 v[{sr}:{sr + 15}], v[{KF}:{KF + 3}], v[8:11], 0")
        k.e("s_waitcnt lgkmcnt(0)")
        k.e(f"v_mfma_f32_32x32x16_bf16 v[{sr}:{sr + 15}], v[{KF + 4}:{KF + 7}], v[12:15], v[{sr}:{sr + 15}]")
        if t in (0, 8):
            k.nop(12)
            for i in range(16):
                ci = (i & 3) + 8 * (i >> 2)
                k.e(f"v_cmp_{'le' if t == 0 else 'gt'}_i32 vcc, {ci}, v21")
                k.nop(1)
                k.e(f"v_cndmask_b32 v{sr + i}, v{sr + i}, v22, vcc")
        k.e(f"s_branch {nxt}")
        k.label(skip)
        for i in range(16):
            k.e(f"v_mov_b32 v{sr + i}, v22")
        k.label(nxt)
    k.nop(12)
    k.e(f"v_max3_f32 v23, v{SB}, v{SB + 1}, v{SB + 2}")
    for i in range(3, 143, 2):
        k.e(f"v_max3_f32 v23, v23, v{SB + i}, v{SB + i + 1}")
    k.e(f"v_max_f32 v23, v23, v{SB + 143}")
    k.e("v_mov_b32 v24, v23")
    k.nop(2)
    k.e("v_permlane32_swap_b32 v23, v24")
    k.nop(1)
    k.e("v_max_f32 v23, v23, v24")
    k.e(f"s_mov_b32 s29, {CEXP!r}")
    k.e("v_mul_f32 v23, s29, v23")
    k.e("v_mov_b32 v25, 0")
    k.e("v_mov_b32 v26, 0")
    for i in range(144):
        k.e(f"v_fma_f32 v{SB + i}, v{SB + i}, s29, -v23")
    for i in range(144):
        k.e(f"v_exp_f32 v{SB + i}, v{SB + i}")
    k.nop(1)
    for i in range(0, 144, 2):
        k.e(f"v_add_f32 v25, v25, v{SB + i}")
        k.e(f"v_add_f32 v26, v26, v{SB + i + 1}")
        k.e(f"v_cvt_pk_bf16_f32 v{SB + i // 2}, v{SB + i}, v{SB + i + 1}")
    k.e("v_add_f32 v25, v25, v26")
    k.e("v_mov_b32 v26, v25")
    k.nop(2)
    k.e("v_permlane32_swap_b32 v25, v26")
    k.nop(1)
    k.e("v_add_f32 v25, v25, v26")
    k.e("v_rcp_f32 v25, v25")
    for t in range(9):
        for u in range(2):
            pr = SB + 8 * t + 4 * u
            k.e(f"ds_read_b64_tr_b16 v[{VF}:{VF + 1}], v20 offset:{(32 * t + 16 * u) * 64}")
            k.e(f"ds_read_b64_tr_b16 v[{VF + 2}:{VF + 3}], v20 offset:{(32 * t + 16 * u) * 64 + 512}")
            k.e("s_waitcnt lgkmcnt(0)")
            cin = "0" if (t == 0 and u == 0) else f"v[{OB}:{OB + 15}]"
            k.e(f"v_mfma_f32_32x32x16_bf16 v[{OB}:{OB + 15}], v[{VF}:{VF + 3}], v[{pr}:{pr + 3}], {cin}")
            k.nop(7)
    k.nop(12)
    for i in range(12):
        k.e(f"v_mul_f32 v{OB + i}, v{OB + i}, v25")
    for q in range(3):
        k.e(f"v_cvt_pk_bf16_f32 v{28 + 2 * q}, v{OB + 4 * q}, v{OB + 4 * q + 1}")
        k.e(f"v_cvt_pk_bf16_f32 v{29 + 2 * q}, v{OB + 4 * q + 2}, v{OB + 4 * q + 3}")
    k.e("buffer_store_dwordx2 v[28:29], v7, s[12:15], 0 offen")
    k.e("buffer_store_dwordx2 v[30:31], v7, s[12:15], 0 offen offset:16")
    k.e("v_cmp_eq_u32 vcc, 0, v3")
    k.e("s_and_saveexec_b64 s[34:35], vcc")
    k.e("buffer_store_dwordx2 v[32:33], v7, s[12:15], 0 offen offset:32")
    k.e("s_mov_b64 exec, s[34:35]")


def gen_mid(name):
    k = K(name)
    g = GemmCfg(BM=128, NC=12, lda=NY * 2)
    done, att = k.newlabel("done"), k.newlabel("att")
    k.e("s_cmp_ge_u32 s2, 672")
    k.e(f"s_cbranch_scc1 {done}")
    k.e("s_load_dwordx2 s[4:5], s[0:1], 40")
    k.e("s_load_dwordx2 s[24:25], s[0:1], 64")
    k.e(f"s_mov_b32 s26, {NY * 2}")
    k.e("s_sub_u32 s36, s2, 160")
    k.e("s_waitcnt lgkmcnt(0)")
    k.e("s_cmp_ge_u32 s2, 160")
    k.e(f"s_cbranch_scc1 {att}")
    k.e("s_mul_hi_u32 s21, s2, 0x33333334")
    k.e("s_mul_i32 s20, s21, 5")
    k.e("s_sub_u32 s20, s2, s20")
    k.e("s_lshr_b32 s37, s21, 4")
    k.e("s_and_b32 s21, s21, 15")
    ws_srd(k, 8, 24, Y_OFF, Y_SZ)
    ws_srd(k, 16, 24, F_OFF, F_SZ)
    k.srd(12, 4, DFF * D * 2)
    k.e("s_mov_b32 s26, 1280")
    k.e(f"s_mul_i32 s28, s21, {128 * NY * 2}")
    k.e("s_mul_i32 s29, s37, 1536")
    k.e("s_add_u32 s28, s28, s29")
    k.e(f"s_add_u32 s28, s28, {3 * D * 2}")
    k.e(f"s_mul_i32 s27, s37, {768 * 1280}")
    k.e("s_lshl_b32 s29, s20, 8")
    k.e("s_add_u32 s27, s27, s29")
    vend = gemm_body(k, g, 8, 12, 28, 27, 26, 8)
    k.nop(16)
    epi_addr(k, g, 21, 20, D * 4, 4, 1)
    k.e(f"s_mul_i32 s38, s37, {S * D * 4}")
    for m in range(g.MF):
        for n in range(g.NF):
            a = (m * g.NF + n) * 16
            for q in range(4):
                for i in range(4):
                    k.e(f"v_accvgpr_read_b32 v{vend + i}, a{a + 4 * q + i}")
                k.e(f"s_add_u32 s31, s38, {m * 32 * D * 4}")
                k.e(f"buffer_store_dwordx4 v[{vend}:{vend + 3}], v1, s[16:19], s31 offen offset:{n * 128 + q * 32}")
                k.nop(1)
    k.e(f"s_branch {done}")
    k.label(att)
    attn_body(k, 36)
    k.label(done)
    k.e("s_endpgm")
    return k.text(vgprs=212, agprs=64), (672, 256, g.lds)


def gen_final(name):
    k = K(name)
    g = GemmCfg(BM=128, NC=10, lda=D * 2)
    done = k.newlabel("done")
    k.e("s_cmp_ge_u32 s2, 80")
    k.e(f"s_cbranch_scc1 {done}")
    k.e("s_load_dwordx2 s[4:5], s[0:1], 16")
    k.e("s_load_dwordx2 s[6:7], s[0:1], 0")
    k.e("s_load_dwordx2 s[22:23], s[0:1], 48")
    k.e("s_load_dwordx2 s[24:25], s[0:1], 64")
    k.e("s_mul_hi_u32 s21, s2, 0x33333334")
    k.e("s_mul_i32 s20, s21, 5")
    k.e("s_sub_u32 s20, s2, s20")
    k.e("s_waitcnt lgkmcnt(0)")
    ws_srd(k, 8, 24, O_OFF, O_SZ)
    ws_srd(k, 16, 24, F_OFF, F_SZ)
    k.srd(12, 4, D * D * 2)
    k.srd(48, 6, S * D * 2)
    k.srd(52, 22, S * D * 2)
    k.e("s_mov_b32 s26, 1280")
    k.e(f"s_mul_i32 s28, s21, {128 * 1280}")
    k.e("s_lshl_b32 s27, s20, 8")
    vend = gemm_body(k, g, 8, 12, 28, 27, 26, 8)
    k.nop(16)
    epi_addr(k, g, 21, 20, D * 4, 4, 1)
    k.e("v_lshrrev_b32 v2, 1, v1")
    T = vend
    for m in range(g.MF):
        for n in range(g.NF):
            a = (m * g.NF + n) * 16
            for q in range(4):
                o4, o2 = n * 128 + q * 32, n * 64 + q * 16
                k.e(f"s_mov_b32 s31, {m * 32 * D * 4}")
                k.e(f"s_mov_b32 s32, {m * 32 * D * 4 + S * D * 4}")
                k.e(f"s_mov_b32 s33, {m * 32 * D * 2}")
                k.e(f"buffer_load_dwordx4 v[{T}:{T + 3}], v1, s[16:19], s31 offen offset:{o4}")
                k.e(f"buffer_load_dwordx4 v[{T + 4}:{T + 7}], v1, s[16:19], s32 offen offset:{o4}")
                k.e(f"buffer_load_dwordx2 v[{T + 8}:{T + 9}], v2, s[48:51], s33 offen offset:{o2}")
                for i in range(4):
                    k.e(f"v_accvgpr_read_b32 v{T + 10 + i}, a{a + 4 * q + i}")
                k.e("s_waitcnt vmcnt(0)")
                for i in range(4):
                    k.e(f"v_add_f32 v{T + i}, v{T + i}, v{T + 4 + i}")
                    k.e(f"v_mul_f32 v{T + 4 + i}, 0xbfb8aa3b, v{T + i}")
                for i in range(4):
                    k.e(f"v_exp_f32 v{T + 4 + i}, v{T + 4 + i}")
                k.nop(1)
                for i in range(4):
                    k.e(f"v_add_f32 v{T + 4 + i}, 1.0, v{T + 4 + i}")
                for i in range(4):
                    k.e(f"v_rcp_f32 v{T + 4 + i}, v{T + 4 + i}")
                k.nop(1)
                for i in range(4):
                    k.e(f"v_mul_f32 v{T + i}, v{T + i}, v{T + 4 + i}")
                k.e(f"v_lshlrev_b32 v{T + 4}, 16, v{T + 8}")
                k.e(f"v_and_b32 v{T + 5}, 0xffff0000, v{T + 8}")
                k.e(f"v_lshlrev_b32 v{T + 6}, 16, v{T + 9}")
                k.e(f"v_and_b32 v{T + 7}, 0xffff0000, v{T + 9}")
                for i in range(4):
                    k.e(f"v_fmac_f32 v{T + 4 + i}, v{T + 10 + i}, v{T + i}")
                k.e(f"v_cvt_pk_bf16_f32 v{T + 8}, v{T + 4}, v{T + 5}")
                k.e(f"v_cvt_pk_bf16_f32 v{T + 9}, v{T + 6}, v{T + 7}")
                k.e(f"buffer_store_dwordx2 v[{T + 8}:{T + 9}], v2, s[52:55], s33 offen offset:{o2}")
                k.nop(1)
    k.label(done)
    k.e("s_endpgm")
    return k.text(vgprs=vend + 16, agprs=64), (80, 256, g.lds)


def build(kernels, path):
    out = []
    for name, _, (gx, bx, lds) in kernels:
        out.append(f"; @launch kernel={name} grid=({gx},1,1) block=({bx},1,1) lds={lds}")
    out.append('.amdgcn_target "amdgcn-amd-amdhsa--gfx950"')
    out.append(".text")
    for _, (code, _), _ in kernels:
        out.append(code)
    out.append('.section .rodata,"a"')
    for _, (_, desc), _ in kernels:
        out.append(".p2align 6")
        out.append(desc)
    open(path, "w").write("\n".join(out) + "\n")


if __name__ == "__main__":
    ks = []
    for nm, fn in (("ln_kernel", gen_ln), ("gemm1_kernel", gen_gemm1), ("mid_kernel", gen_mid), (MAIN, gen_final)):
        t, launch = fn(nm)
        ks.append((nm, t, launch))
    build(ks, sys.argv[1] if len(sys.argv) > 1 else "out.s")
```

```python
import sys
from asmlib import K

S, D, H, DH, WIN, DFF = 2048, 640, 32, 20, 256, 1536
NY = 3 * D + DFF
XN_OFF, XN_SZ = 0, S * D * 2
Y_OFF, Y_SZ = 0x280000, S * NY * 2
O_OFF, O_SZ = 0x1000000, S * D * 2
F_OFF, F_SZ = 0x1400000, 2 * S * D * 4
MAIN = "recurrent_scan__sliding_block__dense_activation_relu__prompt_kernel"


def ws_srd(k, sb, sws, off, size):
    k.e(f"s_add_u32 s{sb}, s{sws}, {off}")
    k.e(f"s_addc_u32 s{sb + 1}, s{sws + 1}, 0")
    k.e(f"s_and_b32 s{sb + 1}, s{sb + 1}, 0xffff")
    k.e(f"s_mov_b32 s{sb + 2}, {size}")
    k.e(f"s_mov_b32 s{sb + 3}, 0x00020000")


def gen_ln(name):
    k = K(name)
    done = k.newlabel("done")
    k.e("s_cmp_ge_u32 s2, 128")
    k.e(f"s_cbranch_scc1 {done}")
    k.e("s_load_dwordx2 s[4:5], s[0:1], 0")
    k.e("s_load_dwordx2 s[6:7], s[0:1], 64")
    k.e("v_lshrrev_b32 v1, 4, v0")
    k.e("s_lshl_b32 s3, s2, 4")
    k.e("v_add_u32 v1, s3, v1")
    k.e("v_mul_u32_u24 v2, 1280, v1")
    k.e("v_and_b32 v3, 15, v0")
    k.e("v_lshl_add_u32 v2, v3, 4, v2")
    k.e("s_waitcnt lgkmcnt(0)")
    k.srd(8, 4, S * D * 2)
    ws_srd(k, 12, 6, XN_OFF, XN_SZ)
    for j in range(5):
        k.e(f"buffer_load_dwordx4 v[{4 + 4 * j}:{7 + 4 * j}], v2, s[8:11], 0 offen offset:{256 * j}")
    k.e("s_waitcnt vmcnt(0)")
    F = 32
    for i in range(20):
        k.e(f"v_lshlrev_b32 v{F + 2 * i}, 16, v{4 + i}")
        k.e(f"v_and_b32 v{F + 2 * i + 1}, 0xffff0000, v{4 + i}")

    def allreduce(reg, tmp):
        for r in (8, 4, 2, 1):
            k.nop(2)
            k.e(f"v_add_f32_dpp v{tmp}, v{reg}, v{reg} row_ror:{r} row_mask:0xf bank_mask:0xf")
            k.e(f"v_mov_b32 v{reg}, v{tmp}")

    k.e(f"v_add_f32 v72, v{F}, v{F + 1}")
    k.e(f"v_add_f32 v73, v{F + 2}, v{F + 3}")
    for i in range(4, 40, 2):
        k.e(f"v_add_f32 v72, v72, v{F + i}")
        k.e(f"v_add_f32 v73, v73, v{F + i + 1}")
    k.e("v_add_f32 v72, v72, v73")
    allreduce(72, 74)
    k.e(f"v_mul_f32 v72, {1.0 / D!r}, v72")
    for i in range(40):
        k.e(f"v_sub_f32 v{F + i}, v{F + i}, v72")
    k.e(f"v_mul_f32 v73, v{F}, v{F}")
    k.e(f"v_mul_f32 v75, v{F + 1}, v{F + 1}")
    for i in range(2, 40, 2):
        k.e(f"v_fmac_f32 v73, v{F + i}, v{F + i}")
        k.e(f"v_fmac_f32 v75, v{F + i + 1}, v{F + i + 1}")
    k.e("v_add_f32 v73, v73, v75")
    allreduce(73, 74)
    k.e(f"v_mov_b32 v75, {1e-5!r}")
    k.e(f"v_fmac_f32 v75, {1.0 / D!r}, v73")
    k.e("v_rsq_f32 v75, v75")
    k.nop(1)
    for i in range(40):
        k.e(f"v_mul_f32 v{F + i}, v{F + i}, v75")
    for i in range(20):
        k.e(f"v_cvt_pk_bf16_f32 v{4 + i}, v{F + 2 * i}, v{F + 2 * i + 1}")
    for j in range(5):
        k.e(f"buffer_store_dwordx4 v[{4 + 4 * j}:{7 + 4 * j}], v2, s[12:15], 0 offen offset:{256 * j}")
    k.label(done)
    k.e("s_endpgm")
    return k.text(vgprs=76), (128, 256, 0)


class GemmCfg:
    def __init__(self, BM, NC, lda):
        self.BM, self.BN, self.NC, self.lda = BM, 128, NC, lda
        self.WM, self.WN = BM // 2, 64
        self.MF, self.NF = self.WM // 32, 2
        self.ABYTES = BM * 128
        self.BBYTES = 64 * 256
        self.STAGE = self.ABYTES + self.BBYTES
        self.nA = BM // 8 // 4
        self.nB = 4
        self.lds = 3 * self.STAGE


def gemm_body(k, g, SA, SB, sArow, sBcol, sLdb, V0=8):
    MF, NF, NC = g.MF, g.NF, g.NC
    vAe, vAo, vB = V0, V0 + 1, V0 + 2
    vRA = [V0 + 3 + i for i in range(4)]
    vRB = [V0 + 7 + i for i in range(NF)]
    vCA = [V0 + 9 + i for i in range(4)]
    vCB = [V0 + 13 + i for i in range(NF)]
    vT0, vT1, vT2 = V0 + 15, V0 + 16, V0 + 17
    fr0 = V0 + 18
    fr0 = (fr0 + 3) // 4 * 4
    FA = [[fr0 + (b * MF + m) * 4 for m in range(MF)] for b in range(2)]
    fb0 = fr0 + 2 * MF * 4
    FB = [[fb0 + (b * NF + n) * 4 for n in range(NF)] for b in range(2)]
    vend = fb0 + 2 * NF * 4
    sW, sWA, sWB, sT, sM = 40, 41, 42, 43, 44
    lda = g.lda
    k.e("v_lshrrev_b32 v%d, 6, v0" % vT0)
    k.nop(1)
    k.e(f"v_readfirstlane_b32 s{sW}, v{vT0}")
    k.e(f"v_and_b32 v{vT1}, 63, v0")
    k.e(f"v_lshrrev_b32 v{vT2}, 3, v{vT1}")
    k.e(f"v_mul_u32_u24 v{vAe}, {lda}, v{vT2}")
    k.e(f"v_lshrrev_b32 v{vT2}, 4, v{vT1}")
    k.e(f"v_and_b32 v{vAo}, 7, v{vT1}")
    k.e(f"v_xor_b32 v{vT2}, v{vT2}, v{vAo}")
    k.e(f"v_xor_b32 v{vAo}, 4, v{vT2}")
    k.e(f"v_lshl_add_u32 v{vAo}, v{vAo}, 4, v{vAe}")
    k.e(f"v_lshl_add_u32 v{vAe}, v{vT2}, 4, v{vAe}")
    k.e(f"v_lshrrev_b32 v{vT2}, 4, v{vT1}")
    k.e(f"v_mul_lo_u32 v{vB}, v{vT2}, s{sLdb}")
    k.e(f"v_lshlrev_b32 v{vT2}, 2, v{vT2}")
    k.e(f"v_and_b32 v{vRA[0]}, 15, v{vT1}")
    k.e(f"v_xor_b32 v{vT2}, v{vT2}, v{vRA[0]}")
    k.e(f"v_lshl_add_u32 v{vB}, v{vT2}, 4, v{vB}")
    k.e(f"s_mul_i32 s{sWA}, s{sW}, {g.nA * 8 * lda}")
    k.e(f"s_add_u32 s{sWA}, s{sWA}, s{sArow}")
    k.e(f"s_lshl_b32 s{sT}, s{sW}, 4")
    k.e(f"s_mul_i32 s{sWB}, s{sT}, s{sLdb}")
    k.e(f"s_add_u32 s{sWB}, s{sWB}, s{sBcol}")
    k.e(f"s_lshr_b32 s{sT}, s{sW}, 1")
    k.e(f"s_mul_i32 s{sT}, s{sT}, {g.WM * 128}")
    k.e(f"v_and_b32 v{vT2}, 31, v{vT1}")
    k.e(f"v_lshl_add_u32 v{vT0}, v{vT2}, 7, s{sT}")
    k.e(f"v_bfe_u32 v{vT2}, v{vT1}, 1, 3")
    k.e(f"v_lshrrev_b32 v{vCA[0]}, 5, v{vT1}")
    for ks in range(4):
        k.e(f"v_add_u32 v{vCA[1]}, {2 * ks}, v{vCA[0]}")
        k.e(f"v_xor_b32 v{vCA[1]}, v{vCA[1]}, v{vT2}")
        k.e(f"v_lshl_add_u32 v{vRA[ks]}, v{vCA[1]}, 4, v{vT0}")
    k.e(f"v_lshrrev_b32 v{vT0}, 5, v{vT1}")
    k.e(f"v_lshlrev_b32 v{vT0}, 3, v{vT0}")
    k.e(f"v_bfe_u32 v{vT2}, v{vT1}, 2, 2")
    k.e(f"v_add_u32 v{vT0}, v{vT0}, v{vT2}")
    k.e(f"v_lshlrev_b32 v{vT0}, 8, v{vT0}")
    k.e(f"v_bfe_u32 v{vCA[1]}, v{vT1}, 4, 1")
    k.e(f"v_lshl_add_u32 v{vT0}, v{vCA[1]}, 5, v{vT0}")
    k.e(f"v_and_b32 v{vCA[1]}, 3, v{vT1}")
    k.e(f"v_lshl_add_u32 v{vT0}, v{vCA[1]}, 3, v{vT0}")
    k.e(f"v_add_u32 v{vT0}, {g.ABYTES}, v{vT0}")
    k.e(f"s_and_b32 s{sT}, s{sW}, 1")
    k.e(f"s_lshl_b32 s{sT}, s{sT}, 1")
    for nf in range(NF):
        k.e(f"s_add_u32 s{sM}, s{sT}, {nf}")
        k.e(f"v_xor_b32 v{vCA[1]}, s{sM}, v{vT2}")
        k.e(f"v_lshl_add_u32 v{vRB[nf]}, v{vCA[1]}, 6, v{vT0}")

    def dma(c):
        st = (c % 3) * g.STAGE
        for j in range(g.nA):
            k.e(f"s_mul_i32 s{sM}, s{sW}, {g.nA * 1024}")
            k.e(f"s_add_u32 m0, s{sM}, {st + j * 1024}")
            k.e(f"s_add_u32 s{sT}, s{sWA}, {j * 8 * lda + c * 128}")
            k.e(f"buffer_load_dwordx4 v{vAe if j % 2 == 0 else vAo}, s[{SA}:{SA + 3}], s{sT} offen lds")
        for j in range(g.nB):
            k.e(f"s_lshl_b32 s{sM}, s{sW}, 12")
            k.e(f"s_add_u32 m0, s{sM}, {st + g.ABYTES + j * 1024}")
            k.e(f"s_mul_i32 s{sT}, s{sLdb}, {c * 64 + 4 * j}")
            k.e(f"s_add_u32 s{sT}, s{sT}, s{sWB}")
            k.e(f"buffer_load_dwordx4 v{vB}, s[{SB}:{SB + 3}], s{sT} offen lds")

    nd = g.nA + g.nB

    def setaddr(c):
        st = (c % 3) * g.STAGE
        for ks in range(4):
            k.e(f"v_add_u32 v{vCA[ks]}, {st}, v{vRA[ks]}")
        for nf in range(NF):
            k.e(f"v_add_u32 v{vCB[nf]}, {st}, v{vRB[nf]}")

    def reads(ks, b):
        for m in range(MF):
            k.e(f"ds_read_b128 v[{FA[b][m]}:{FA[b][m] + 3}], v{vCA[ks]} offset:{m * 4096}")
        for n in range(NF):
            k.e(f"ds_read_b64_tr_b16 v[{FB[b][n]}:{FB[b][n] + 1}], v{vCB[n]} offset:{ks * 4096}")
            k.e(f"ds_read_b64_tr_b16 v[{FB[b][n] + 2}:{FB[b][n] + 3}], v{vCB[n]} offset:{ks * 4096 + 1024}")

    nr = MF + 2 * NF

    def mfmas(b, first):
        for m in range(MF):
            for n in range(NF):
                a = (m * NF + n) * 16
                cin = "0" if first else f"a[{a}:{a + 15}]"
                k.e(f"v_mfma_f32_32x32x16_bf16 a[{a}:{a + 15}], v[{FB[b][n]}:{FB[b][n] + 3}], "
                    f"v[{FA[b][m]}:{FA[b][m] + 3}], {cin}")

    for c in range(min(3, NC)):
        dma(c)
    k.e(f"s_waitcnt vmcnt({(min(3, NC) - 1) * nd})")
    k.e("s_barrier")
    setaddr(0)
    reads(0, 0)
    for c in range(NC):
        for ks in range(4):
            b = ks & 1
            if ks < 3:
                reads(ks + 1, b ^ 1)
                k.e(f"s_waitcnt lgkmcnt({nr})")
                mfmas(b, c == 0 and ks == 0)
            else:
                k.e("s_waitcnt lgkmcnt(0)")
                if c + 1 < NC:
                    inflight = min(NC - 1, c + 2) - (c + 1)
                    k.e(f"s_waitcnt vmcnt({inflight * nd})")
                    k.e("s_barrier")
                    if c + 3 < NC:
                        dma(c + 3)
                    setaddr(c + 1)
                    reads(0, b ^ 1)
                mfmas(b, False)
    return vend


def gen_gemm1(name):
    k = K(name)
    g = GemmCfg(BM=256, NC=D // 64, lda=D * 2)
    done = k.newlabel("done")
    k.e("s_cmp_ge_u32 s2, 256")
    k.e(f"s_cbranch_scc1 {done}")
    k.e("s_and_b32 s20, s2, 7")
    k.e("s_lshr_b32 s21, s2, 3")
    k.e("s_and_b32 s22, s21, 3")
    k.e("s_lshl_b32 s22, s22, 3")
    k.e("s_add_u32 s20, s20, s22")
    k.e("s_lshr_b32 s21, s21, 2")
    k.e("s_cmp_ge_u32 s20, 27")
    k.e(f"s_cbranch_scc1 {done}")
    k.e("s_load_dwordx2 s[4:5], s[0:1], 8")
    k.e("s_load_dwordx2 s[6:7], s[0:1], 32")
    k.e("s_load_dwordx2 s[24:25], s[0:1], 64")
    k.e("s_waitcnt lgkmcnt(0)")
    ws_srd(k, 8, 24, XN_OFF, XN_SZ)
    ws_srd(k, 16, 24, Y_OFF, Y_SZ)
    k.e(f"s_mov_b32 s14, {D * DFF * 2}")
    k.e(f"s_mov_b32 s26, {DFF * 2}")
    k.e("s_mov_b32 s29, 0")
    k.e("s_cmp_lt_u32 s20, 15")
    k.e("s_cselect_b32 s12, s4, s6")
    k.e("s_cselect_b32 s13, s5, s7")
    k.e(f"s_cselect_b32 s14, {D * 3 * D * 2}, s14")
    k.e(f"s_cselect_b32 s26, {3 * D * 2}, s26")
    k.e("s_cselect_b32 s27, 0, 15")
    k.e("s_cselect_b32 s29, 0xff7fffff, s29")
    k.e("s_and_b32 s13, s13, 0xffff")
    k.e("s_mov_b32 s15, 0x00020000")
    k.e("s_sub_u32 s27, s20, s27")
    k.e("s_lshl_b32 s27, s27, 8")
    k.e(f"s_mul_i32 s28, s21, {g.BM * D * 2}")
    V0 = 8
    vend = gemm_body(k, g, 8, 12, 28, 27, 26, V0)
    T = vend
    RS = epi_lds(k, g, T, False, 29)
    k.e("v_lshrrev_b32 v2, 4, v0")
    k.e("v_and_b32 v3, 15, v0")
    k.e(f"v_mul_u32_u24 v1, {RS}, v2")
    k.e("v_lshl_add_u32 v1, v3, 4, v1")
    k.e(f"s_mul_i32 s30, s21, {g.BM}")
    k.e("v_add_u32 v2, s30, v2")
    k.e(f"v_mul_u32_u24 v2, {NY * 2}, v2")
    k.e("v_lshl_add_u32 v2, v3, 4, v2")
    k.e("s_lshl_b32 s31, s20, 8")
    k.e("v_add_u32 v2, s31, v2")
    for i in range(g.BM // 16):
        r = T + 4 * (i % 4)
        k.e(f"ds_read_b128 v[{r}:{r + 3}], v1 offset:{i * 16 * RS}")
        k.e("s_waitcnt lgkmcnt(0)")
        k.e(f"s_mov_b32 s31, {i * 16 * NY * 2}")
        k.e(f"buffer_store_dwordx4 v[{r}:{r + 3}], v2, s[16:19], s31 offen")
    k.label(done)
    k.e("s_endpgm")
    return k.text(vgprs=vend + 16, agprs=g.MF * g.NF * 16), (256, 256, g.lds)


def epi_lds(k, g, T, f32, sthr=None):
    esz = 4 if f32 else 2
    RS = 128 * esz + 16
    k.nop(16)
    k.e("s_waitcnt lgkmcnt(0)")
    k.e("s_barrier")
    k.e("v_and_b32 v3, 63, v0")
    k.e("v_and_b32 v4, 31, v3")
    k.e("s_lshr_b32 s30, s40, 1")
    k.e(f"s_mul_i32 s30, s30, {g.WM}")
    k.e("v_add_u32 v4, s30, v4")
    k.e(f"v_mul_u32_u24 v1, {RS}, v4")
    k.e("v_lshrrev_b32 v4, 5, v3")
    k.e(f"v_mul_u32_u24 v4, {4 * esz}, v4")
    k.e("v_add_u32 v1, v4, v1")
    k.e("s_and_b32 s30, s40, 1")
    k.e(f"s_mul_i32 s30, s30, {64 * esz}")
    k.e("v_add_u32 v1, s30, v1")
    for m in range(g.MF):
        for n in range(g.NF):
            a = (m * g.NF + n) * 16
            for q in range(4):
                for i in range(4):
                    k.e(f"v_accvgpr_read_b32 v{T + i}, a{a + 4 * q + i}")
                off = m * 32 * RS + (n * 32 + q * 8) * esz
                if f32:
                    k.e(f"ds_write_b128 v1, v[{T}:{T + 3}] offset:{off}")
                else:
                    if sthr is not None:
                        for i in range(4):
                            k.e(f"v_max_f32 v{T + i}, s{sthr}, v{T + i}")
                    k.e(f"v_cvt_pk_bf16_f32 v{T + 4}, v{T}, v{T + 1}")
                    k.e(f"v_cvt_pk_bf16_f32 v{T + 5}, v{T + 2}, v{T + 3}")
                    k.e(f"ds_write_b64 v1, v[{T + 4}:{T + 5}] offset:{off}")
    k.e("s_waitcnt lgkmcnt(0)")
    k.e("s_barrier")
    return RS


def epi_addr(k, g, smt, snt, ldc_bytes, esz, va):
    k.e("v_and_b32 v3, 63, v0")
    k.e("v_and_b32 v4, 31, v3")
    k.e("s_lshr_b32 s30, s40, 1")
    k.e(f"s_mul_i32 s30, s30, {g.WM}")
    k.e(f"s_mul_i32 s31, s{smt}, {g.BM}")
    k.e("s_add_u32 s30, s30, s31")
    k.e("v_add_u32 v4, s30, v4")
    k.e(f"v_mul_u32_u24 v{va}, {ldc_bytes}, v4")
    k.e("v_lshrrev_b32 v4, 5, v3")
    k.e(f"v_mul_u32_u24 v4, {4 * esz}, v4")
    k.e(f"v_add_u32 v{va}, v4, v{va}")
    k.e("s_and_b32 s30, s40, 1")
    k.e(f"s_mul_i32 s30, s30, {64 * esz}")
    k.e(f"s_mul_i32 s31, s{snt}, {128 * esz}")
    k.e("s_add_u32 s30, s30, s31")
    k.e(f"v_add_u32 v{va}, s30, v{va}")


CEXP = (DH ** -0.5) * 1.4426950408889634


def attn_body(k, sblk):
    KB, VB = 0, 384 * 64
    ws_srd(k, 8, 24, Y_OFF, Y_SZ)
    ws_srd(k, 12, 24, O_OFF, O_SZ)
    k.e(f"s_and_b32 s20, s{sblk}, 31")
    k.e(f"s_lshr_b32 s21, s{sblk}, 5")
    k.e("s_lshl_b32 s21, s21, 7")
    k.e("s_mul_i32 s22, s20, 40")
    k.e("v_lshrrev_b32 v1, 6, v0")
    k.nop(1)
    k.e("v_readfirstlane_b32 s40, v1")
    for rep in range(2):
        skip = k.newlabel("stg")
        if rep:
            k.e("v_cmp_gt_u32 vcc, 128, v0")
            k.e("s_and_saveexec_b64 s[34:35], vcc")
            k.e(f"s_cbranch_execz {skip}")
        k.e(f"v_add_u32 v2, {256 * rep}, v0")
        k.e("s_sub_u32 s23, s21, 256")
        k.e("v_add_u32 v3, s23, v2")
        k.e(f"v_mul_lo_u32 v3, v3, s26")
        k.e("v_add_u32 v3, s22, v3")
        for p in range(5):
            k.e(f"buffer_load_dwordx2 v[{10 + 2 * p}:{11 + 2 * p}], v3, s[8:11], 0 offen offset:{1280 + 8 * p}")
            k.e(f"buffer_load_dwordx2 v[{20 + 2 * p}:{21 + 2 * p}], v3, s[8:11], 0 offen offset:{2560 + 8 * p}")
        k.e("v_lshlrev_b32 v4, 6, v2")
        k.e("v_bfe_u32 v5, v2, 2, 2")
        k.e("v_mov_b32 v30, 0")
        k.e("v_mov_b32 v31, 0")
        k.e("v_mov_b32 v32, 0")
        k.e("v_mov_b32 v33, 0")
        for sl in range(4):
            k.e(f"v_xor_b32 v6, {sl}, v5")
            k.e(f"v_lshl_add_u32 v{34 + sl}, v6, 4, v4")
        k.e(f"ds_write_b64 v36, v[30:31] offset:{KB + 8}")
        k.e(f"ds_write_b128 v37, v[30:33] offset:{KB}")
        k.e(f"ds_write_b64 v4, v[30:31] offset:{VB + 40}")
        k.e(f"ds_write_b128 v4, v[30:33] offset:{VB + 48}")
        k.e("s_waitcnt vmcnt(0)")
        for p in range(5):
            k.e(f"ds_write_b64 v{34 + (p >> 1)}, v[{10 + 2 * p}:{11 + 2 * p}] offset:{KB + (p & 1) * 8}")
            k.e(f"ds_write_b64 v4, v[{20 + 2 * p}:{21 + 2 * p}] offset:{VB + 8 * p}")
        if rep:
            k.label(skip)
            k.e("s_mov_b64 exec, s[34:35]")
    k.e("v_and_b32 v1, 63, v0")
    k.e("v_and_b32 v2, 31, v1")
    k.e("v_lshrrev_b32 v3, 5, v1")
    k.e("s_lshl_b32 s23, s40, 5")
    k.e("s_add_u32 s27, s23, s21")
    k.e("v_add_u32 v4, s27, v2")
    k.e("v_mul_lo_u32 v5, v4, s26")
    k.e("v_add_u32 v5, s22, v5")
    k.e("v_lshl_add_u32 v6, v3, 4, v5")
    k.e("buffer_load_dwordx4 v[8:11], v6, s[8:11], 0 offen")
    k.e("buffer_load_dwordx2 v[12:13], v5, s[8:11], 0 offen offset:32")
    k.e("v_mov_b32 v14, 0")
    k.e("v_mov_b32 v15, 0")
    k.e("v_mul_u32_u24 v7, 1280, v4")
    k.e("v_add_u32 v7, s22, v7")
    k.e("v_lshl_add_u32 v7, v3, 3, v7")
    k.e("v_bfe_u32 v16, v2, 2, 2")
    k.e("v_lshl_add_u32 v17, s23, 6, 0")
    k.e("v_lshl_add_u32 v17, v2, 6, v17")
    k.e("v_xor_b32 v18, v3, v16")
    k.e("v_lshl_add_u32 v18, v18, 4, v17")
    k.e("v_add_u32 v19, 2, v3")
    k.e("v_xor_b32 v19, v19, v16")
    k.e("v_lshl_add_u32 v19, v19, 4, v17")
    k.e("v_lshlrev_b32 v20, 2, v3")
    k.e("v_bfe_u32 v21, v1, 2, 2")
    k.e("v_add_u32 v20, v20, v21")
    k.e("v_add_u32 v20, s23, v20")
    k.e("v_lshlrev_b32 v20, 6, v20")
    k.e("v_bfe_u32 v21, v1, 4, 1")
    k.e("v_lshl_add_u32 v20, v21, 5, v20")
    k.e("v_and_b32 v21, 3, v1")
    k.e("v_lshl_add_u32 v20, v21, 3, v20")
    k.e(f"v_add_u32 v20, {VB}, v20")
    k.e("v_lshlrev_b32 v21, 2, v3")
    k.e("v_sub_u32 v21, v2, v21")
    k.e("s_waitcnt vmcnt(0)")
    k.e("v_cmp_eq_u32 vcc, 0, v3")
    k.nop(1)
    k.e("v_cndmask_b32 v12, 0, v12, vcc")
    k.e("v_cndmask_b32 v13, 0, v13, vcc")
    k.e("s_waitcnt lgkmcnt(0)")
    k.e("s_barrier")
    SB, KF, OB, VF = 64, 24, 40, 32
    k.e("v_mov_b32 v22, 0xf149f2ca")
    for t in range(9):
        sr = SB + 16 * t
        skip, nxt = k.newlabel("sk"), k.newlabel("nx")
        k.e(f"s_add_u32 s28, s27, {32 * t}")
        k.e("s_cmp_lt_u32 s28, 256")
        k.e(f"s_cbranch_scc1 {skip}")
        k.e(f"ds_read_b128 v[{KF}:{KF + 3}], v18 offset:{t * 2048}")
        k.e(f"ds_read_b128 v[{KF + 4}:{KF + 7}], v19 offset:{t * 2048}")
        k.e("s_waitcnt lgkmcnt(1)")
        k.e(f"v_mfma_f32_32x32x16_bf16 v[{sr}:{sr + 15}], v[{KF}:{KF + 3}], v[8:11], 0")
        k.e("s_waitcnt lgkmcnt(0)")
        k.e(f"v_mfma_f32_32x32x16_bf16 v[{sr}:{sr + 15}], v[{KF + 4}:{KF + 7}], v[12:15], v[{sr}:{sr + 15}]")
        if t in (0, 8):
            k.nop(12)
            for i in range(16):
                ci = (i & 3) + 8 * (i >> 2)
                k.e(f"v_cmp_{'le' if t == 0 else 'gt'}_i32 vcc, {ci}, v21")
                k.nop(1)
                k.e(f"v_cndmask_b32 v{sr + i}, v{sr + i}, v22, vcc")
        k.e(f"s_branch {nxt}")
        k.label(skip)
        for i in range(16):
            k.e(f"v_mov_b32 v{sr + i}, v22")
        k.label(nxt)
    k.nop(12)
    k.e(f"v_max3_f32 v23, v{SB}, v{SB + 1}, v{SB + 2}")
    for i in range(3, 143, 2):
        k.e(f"v_max3_f32 v23, v23, v{SB + i}, v{SB + i + 1}")
    k.e(f"v_max_f32 v23, v23, v{SB + 143}")
    k.e("v_mov_b32 v24, v23")
    k.nop(2)
    k.e("v_permlane32_swap_b32 v23, v24")
    k.nop(1)
    k.e("v_max_f32 v23, v23, v24")
    k.e(f"s_mov_b32 s29, {CEXP!r}")
    k.e("v_mul_f32 v23, s29, v23")
    k.e("v_mov_b32 v25, 0")
    k.e("v_mov_b32 v26, 0")
    for i in range(144):
        k.e(f"v_fma_f32 v{SB + i}, v{SB + i}, s29, -v23")
    for i in range(144):
        k.e(f"v_exp_f32 v{SB + i}, v{SB + i}")
    k.nop(1)
    for i in range(0, 144, 2):
        k.e(f"v_add_f32 v25, v25, v{SB + i}")
        k.e(f"v_add_f32 v26, v26, v{SB + i + 1}")
        k.e(f"v_cvt_pk_bf16_f32 v{SB + i // 2}, v{SB + i}, v{SB + i + 1}")
    k.e("v_add_f32 v25, v25, v26")
    k.e("v_mov_b32 v26, v25")
    k.nop(2)
    k.e("v_permlane32_swap_b32 v25, v26")
    k.nop(1)
    k.e("v_add_f32 v25, v25, v26")
    k.e("v_rcp_f32 v56, v25")
    VBUF = [24, 28, 32, 36]
    steps = [(t, u) for t in range(9) for u in range(2)]

    def vread(j):
        t, u = steps[j]
        vf = VBUF[j % 4]
        k.e(f"ds_read_b64_tr_b16 v[{vf}:{vf + 1}], v20 offset:{(32 * t + 16 * u) * 64}")
        k.e(f"ds_read_b64_tr_b16 v[{vf + 2}:{vf + 3}], v20 offset:{(32 * t + 16 * u) * 64 + 512}")
    for j in range(3):
        vread(j)
    for j, (t, u) in enumerate(steps):
        pr = SB + 8 * t + 4 * u
        if j + 3 < 18:
            vread(j + 3)
            k.e("s_waitcnt lgkmcnt(6)")
        else:
            k.e(f"s_waitcnt lgkmcnt({2 * (17 - j)})")
        cin = "0" if j == 0 else f"v[{OB}:{OB + 15}]"
        k.e(f"v_mfma_f32_32x32x16_bf16 v[{OB}:{OB + 15}], v[{VBUF[j % 4]}:{VBUF[j % 4] + 3}], v[{pr}:{pr + 3}], {cin}")
    k.nop(12)
    for i in range(12):
        k.e(f"v_mul_f32 v{OB + i}, v{OB + i}, v56")
    for q in range(3):
        k.e(f"v_cvt_pk_bf16_f32 v{28 + 2 * q}, v{OB + 4 * q}, v{OB + 4 * q + 1}")
        k.e(f"v_cvt_pk_bf16_f32 v{29 + 2 * q}, v{OB + 4 * q + 2}, v{OB + 4 * q + 3}")
    k.e("buffer_store_dwordx2 v[28:29], v7, s[12:15], 0 offen")
    k.e("buffer_store_dwordx2 v[30:31], v7, s[12:15], 0 offen offset:16")
    k.e("v_cmp_eq_u32 vcc, 0, v3")
    k.e("s_and_saveexec_b64 s[34:35], vcc")
    k.e("buffer_store_dwordx2 v[32:33], v7, s[12:15], 0 offen offset:32")
    k.e("s_mov_b64 exec, s[34:35]")


def gen_mid(name):
    k = K(name)
    g = GemmCfg(BM=128, NC=12, lda=NY * 2)
    done, att = k.newlabel("done"), k.newlabel("att")
    k.e("s_cmp_ge_u32 s2, 672")
    k.e(f"s_cbranch_scc1 {done}")
    k.e("s_load_dwordx2 s[4:5], s[0:1], 40")
    k.e("s_load_dwordx2 s[24:25], s[0:1], 64")
    k.e(f"s_mov_b32 s26, {NY * 2}")
    k.e("s_sub_u32 s36, s2, 160")
    k.e("s_waitcnt lgkmcnt(0)")
    k.e("s_cmp_ge_u32 s2, 160")
    k.e(f"s_cbranch_scc1 {att}")
    k.e("s_mul_hi_u32 s21, s2, 0x33333334")
    k.e("s_mul_i32 s20, s21, 5")
    k.e("s_sub_u32 s20, s2, s20")
    k.e("s_lshr_b32 s37, s21, 4")
    k.e("s_and_b32 s21, s21, 15")
    ws_srd(k, 8, 24, Y_OFF, Y_SZ)
    ws_srd(k, 16, 24, F_OFF, F_SZ)
    k.srd(12, 4, DFF * D * 2)
    k.e("s_mov_b32 s26, 1280")
    k.e(f"s_mul_i32 s28, s21, {128 * NY * 2}")
    k.e("s_mul_i32 s29, s37, 1536")
    k.e("s_add_u32 s28, s28, s29")
    k.e(f"s_add_u32 s28, s28, {3 * D * 2}")
    k.e(f"s_mul_i32 s27, s37, {768 * 1280}")
    k.e("s_lshl_b32 s29, s20, 8")
    k.e("s_add_u32 s27, s27, s29")
    vend = gemm_body(k, g, 8, 12, 28, 27, 26, 8)
    RS = epi_lds(k, g, vend, True)
    k.e("v_lshrrev_b32 v2, 5, v0")
    k.e("v_and_b32 v3, 31, v0")
    k.e(f"v_mul_u32_u24 v1, {RS}, v2")
    k.e("v_lshl_add_u32 v1, v3, 4, v1")
    k.e("s_lshl_b32 s30, s21, 7")
    k.e("v_add_u32 v2, s30, v2")
    k.e(f"v_mul_u32_u24 v2, {D * 4}, v2")
    k.e("v_lshl_add_u32 v2, v3, 4, v2")
    k.e("s_lshl_b32 s31, s20, 9")
    k.e("v_add_u32 v2, s31, v2")
    k.e(f"s_mul_i32 s38, s37, {S * D * 4}")
    for i in range(16):
        r = vend + 4 * (i % 4)
        k.e(f"ds_read_b128 v[{r}:{r + 3}], v1 offset:{i * 8 * RS}")
        k.e("s_waitcnt lgkmcnt(0)")
        k.e(f"s_add_u32 s31, s38, {i * 8 * D * 4}")
        k.e(f"buffer_store_dwordx4 v[{r}:{r + 3}], v2, s[16:19], s31 offen")
    k.e(f"s_branch {done}")
    k.label(att)
    attn_body(k, 36)
    k.label(done)
    k.e("s_endpgm")
    return k.text(vgprs=212, agprs=64), (672, 256, g.lds)


def gen_final(name):
    k = K(name)
    g = GemmCfg(BM=128, NC=10, lda=D * 2)
    done = k.newlabel("done")
    k.e("s_cmp_ge_u32 s2, 80")
    k.e(f"s_cbranch_scc1 {done}")
    k.e("s_load_dwordx2 s[4:5], s[0:1], 16")
    k.e("s_load_dwordx2 s[6:7], s[0:1], 0")
    k.e("s_load_dwordx2 s[22:23], s[0:1], 48")
    k.e("s_load_dwordx2 s[24:25], s[0:1], 64")
    k.e("s_mul_hi_u32 s21, s2, 0x33333334")
    k.e("s_mul_i32 s20, s21, 5")
    k.e("s_sub_u32 s20, s2, s20")
    k.e("s_waitcnt lgkmcnt(0)")
    ws_srd(k, 8, 24, O_OFF, O_SZ)
    ws_srd(k, 16, 24, F_OFF, F_SZ)
    k.srd(12, 4, D * D * 2)
    k.srd(48, 6, S * D * 2)
    k.srd(52, 22, S * D * 2)
    k.e("s_mov_b32 s26, 1280")
    k.e(f"s_mul_i32 s28, s21, {128 * 1280}")
    k.e("s_lshl_b32 s27, s20, 8")
    vend = gemm_body(k, g, 8, 12, 28, 27, 26, 8)
    T = vend
    k.e("v_lshrrev_b32 v5, 4, v0")
    k.e("v_and_b32 v6, 15, v0")
    k.e("s_lshl_b32 s30, s21, 7")
    k.e("v_add_u32 v7, s30, v5")
    k.e(f"v_mul_u32_u24 v7, 1280, v7")
    k.e("v_lshl_add_u32 v7, v6, 4, v7")
    k.e("s_lshl_b32 s31, s20, 8")
    k.e("v_add_u32 v7, s31, v7")
    k.e("v_lshlrev_b32 v2, 1, v7")
    P = T + 8
    for i in range(8):
        r = P + 20 * i
        k.e(f"s_mov_b32 s31, {i * 16 * D * 4}")
        k.e(f"s_mov_b32 s32, {i * 16 * D * 4 + S * D * 4}")
        k.e(f"s_mov_b32 s33, {i * 16 * D * 2}")
        k.e(f"buffer_load_dwordx4 v[{r}:{r + 3}], v2, s[16:19], s31 offen")
        k.e(f"buffer_load_dwordx4 v[{r + 4}:{r + 7}], v2, s[16:19], s31 offen offset:16")
        k.e(f"buffer_load_dwordx4 v[{r + 8}:{r + 11}], v2, s[16:19], s32 offen")
        k.e(f"buffer_load_dwordx4 v[{r + 12}:{r + 15}], v2, s[16:19], s32 offen offset:16")
        k.e(f"buffer_load_dwordx4 v[{r + 16}:{r + 19}], v7, s[48:51], s33 offen")
    RS = epi_lds(k, g, T, False)
    k.e(f"v_mul_u32_u24 v1, {RS}, v5")
    k.e("v_lshl_add_u32 v1, v6, 4, v1")
    k.e("s_waitcnt vmcnt(0)")
    for i in range(8):
        r = P + 20 * i
        k.e(f"ds_read_b128 v[{T}:{T + 3}], v1 offset:{i * 16 * RS}")
        for j in range(8):
            k.e(f"v_add_f32 v{r + j}, v{r + j}, v{r + 8 + j}")
            k.e(f"v_mul_f32 v{r + 8 + j}, 0xbfb8aa3b, v{r + j}")
        for j in range(8):
            k.e(f"v_exp_f32 v{r + 8 + j}, v{r + 8 + j}")
        k.nop(1)
        for j in range(8):
            k.e(f"v_add_f32 v{r + 8 + j}, 1.0, v{r + 8 + j}")
        for j in range(8):
            k.e(f"v_rcp_f32 v{r + 8 + j}, v{r + 8 + j}")
        k.nop(1)
        for j in range(8):
            k.e(f"v_mul_f32 v{r + j}, v{r + j}, v{r + 8 + j}")
        k.e("s_waitcnt lgkmcnt(0)")
        for j in range(4):
            k.e(f"v_lshlrev_b32 v{r + 8 + 2 * j}, 16, v{T + j}")
            k.e(f"v_and_b32 v{r + 9 + 2 * j}, 0xffff0000, v{T + j}")
            k.e(f"v_lshlrev_b32 v{T + 4}, 16, v{r + 16 + j}")
            k.e(f"v_and_b32 v{T + 5}, 0xffff0000, v{r + 16 + j}")
            k.e(f"v_fmac_f32 v{T + 4}, v{r + 8 + 2 * j}, v{r + 2 * j}")
            k.e(f"v_fmac_f32 v{T + 5}, v{r + 9 + 2 * j}, v{r + 2 * j + 1}")
            k.e(f"v_cvt_pk_bf16_f32 v{r + 16 + j}, v{T + 4}, v{T + 5}")
        k.e(f"s_mov_b32 s33, {i * 16 * D * 2}")
        k.e(f"buffer_store_dwordx4 v[{r + 16}:{r + 19}], v7, s[52:55], s33 offen")
    k.label(done)
    k.e("s_endpgm")
    return k.text(vgprs=vend + 8 + 160, agprs=64), (80, 256, g.lds)


def build(kernels, path):
    out = []
    for name, _, (gx, bx, lds) in kernels:
        out.append(f"; @launch kernel={name} grid=({gx},1,1) block=({bx},1,1) lds={lds}")
    out.append('.amdgcn_target "amdgcn-amd-amdhsa--gfx950"')
    out.append(".text")
    for _, (code, _), _ in kernels:
        out.append(code)
    out.append('.section .rodata,"a"')
    for _, (_, desc), _ in kernels:
        out.append(".p2align 6")
        out.append(desc)
    open(path, "w").write("\n".join(out) + "\n")


if __name__ == "__main__":
    ks = []
    for nm, fn in (("ln_kernel", gen_ln), ("gemm1_kernel", gen_gemm1), ("mid_kernel", gen_mid), (MAIN, gen_final)):
        t, launch = fn(nm)
        ks.append((nm, t, launch))
    build(ks, sys.argv[1] if len(sys.argv) > 1 else "out.s")
```
